```python
import torch

def _softmax(x, axis=-1):
    return torch.softmax(x, dim=axis)
def _gelu(x):
    return torch.nn.functional.gelu(x, approximate="tanh")
def _silu(x):
    return torch.nn.functional.silu(x)
def _sigmoid(x):
    return torch.sigmoid(x)
def _layernorm(x, axis=-1, eps=1e-5):
    m = x.mean(dim=axis, keepdim=True)
    v = x.var(dim=axis, keepdim=True, unbiased=False)
    return (x - m) / torch.sqrt(v + eps)
def _scatter_add(tgt, idx, src, axis=0):
    return tgt.clone().index_add_(axis, idx, src)
def _segment_sum(src, seg, n):
    out = torch.zeros((n,) + src.shape[1:], dtype=src.dtype)
    return out.index_add_(0, seg, src)
def _pad(x, pw):
    flat = tuple(v for pair in reversed(pw) for v in pair)
    return torch.nn.functional.pad(x, flat)

kernel_name = 'standalone__moe_arch_mod__prompt'

def setup_inputs():

    _w = (lambda a: (lambda t: t.to(torch.bfloat16) if t.is_floating_point() else t)(torch.as_tensor(a)))
    B, S, D, F, C = 1, 2048, 576, 4608, 8
    return {
        "x": _w((lambda *s: torch.randn(*s, dtype=torch.bfloat16) * 0.1)(B, S, D)),
        "w_r": _w((lambda *s: torch.randn(*s, dtype=torch.bfloat16) * 0.1)(D)),
        "w_gate": _w((lambda *s: torch.randn(*s, dtype=torch.bfloat16) * 0.1)(D, F)),
        "w_up": _w((lambda *s: torch.randn(*s, dtype=torch.bfloat16) * 0.1)(D, F)),
        "w_down": _w((lambda *s: torch.randn(*s, dtype=torch.bfloat16) * 0.1)(F, D)),
    }

def reference(x, w_r, w_gate, w_up, w_down):
    B, S, D = x.shape
    C = 8
    r = x @ w_r
    idx = torch.argsort(-r, axis=-1)[:, :C]
    idx_e = (lambda x, n, axis: torch.repeat_interleave(x, n, dim=axis))(idx.reshape(B, C, 1), D, axis=2)
    x_sel = (lambda x, i, axis: torch.take_along_dim(x, i, dim=axis))(x, idx_e, axis=1)
    g = _silu(x_sel @ w_gate)
    u = x_sel @ w_up
    y = (g * u) @ w_down
    r_sel = _sigmoid((lambda x, i, axis: torch.take_along_dim(x, i, dim=axis))(r, idx, axis=1))
    y = y * r_sel.reshape(B, C, 1)
    b_off = (torch.arange(B) * S).reshape(B, 1)
    flat_idx = (idx + b_off).reshape(B * C)
    zero = (x * 0.0).reshape(B * S, D)
    upd = _scatter_add(zero, flat_idx, y.reshape(B * C, D), axis=0)
    return x + upd.reshape(B, S, D)
```

```python
import sys
L=[]
def e(s=""): L.append(s)
HEADER = open('standalone__moe_arch_mod__prompt.s.ref').read().split('; Override launch')[0]
KEYS=0; SEL=8192; HOFF=16384; PART=131072
def kd(name, vgpr, sgpr=64):
    acc=(vgpr+3)//4*4
    return f""".section .rodata,"a"
.p2align 6
.amdhsa_kernel {name}
  .amdhsa_next_free_vgpr {vgpr}
  .amdhsa_next_free_sgpr {sgpr}
  .amdhsa_accum_offset {acc}
  .amdhsa_group_segment_fixed_size 0
  .amdhsa_kernarg_size 64
  .amdhsa_user_sgpr_count 2
  .amdhsa_user_sgpr_kernarg_segment_ptr 1
  .amdhsa_system_sgpr_workgroup_id_x 1
  .amdhsa_float_denorm_mode_32 3
.end_amdhsa_kernel
.text
"""
def start(name, nwg):
    e(f".globl {name}\n.p2align 8\n.type {name},@function\n{name}:")
    e(f"  s_cmp_ge_u32 s2, {nwg}")
    e(f"  s_cbranch_scc1 {name}_end")
    e("  s_load_dwordx16 s[4:19], s[0:1], 0")
def end(name):
    e(f"{name}_end:\n  s_endpgm")

e(HEADER.rstrip())
e("; @launch kernel=k1_kernel grid=(256,1,1) block=(64,1,1) lds=0")
e("; @launch kernel=k2_kernel grid=(144,1,1) block=(192,1,1) lds=8192")
e("; @launch kernel=k3_kernel grid=(72,1,1) block=(192,1,1) lds=8192")
e("; @launch kernel=k4_kernel grid=(72,1,1) block=(64,1,1) lds=0")
e('.amdgcn_target "amdgcn-amd-amdhsa--gfx950"\n.text')

start("k1_kernel",256)
e("  v_lshrrev_b32 v1, 3, v0")
e("  v_and_b32 v2, 7, v0")
e("  v_lshlrev_b32 v2, 4, v2            ; chunk*16")
e("  s_lshl_b32 s3, s2, 3")
e("  v_add_u32 v3, s3, v1               ; token")
e("  v_mul_u32_u24 v4, 1152, v3")
e("  v_add_u32 v4, v4, v2")
e("  s_waitcnt lgkmcnt(0)")
for b in range(9):
    e(f"  global_load_dwordx4 v[{8+4*b}:{11+4*b}], v4, s[4:5] offset:{128*b}")
for b in range(9):
    e(f"  global_load_dwordx4 v[{44+4*b}:{47+4*b}], v2, s[6:7] offset:{128*b}")
e("  v_mov_b32 v5, 0\n  v_mov_b32 v6, 0")
e("  s_waitcnt vmcnt(0)")
for b in range(9):
    for d in range(4):
        e(f"  v_dot2c_f32_bf16 v{5+(d&1)}, v{8+4*b+d}, v{44+4*b+d}")
e("  s_nop 3")
e("  v_add_f32 v5, v5, v6")
e("  s_nop 1")
e("  v_add_f32_dpp v5, v5, v5 quad_perm:[1,0,3,2] row_mask:0xf bank_mask:0xf")
e("  s_nop 1")
e("  v_add_f32_dpp v5, v5, v5 quad_perm:[2,3,0,1] row_mask:0xf bank_mask:0xf")
e("  s_nop 1")
e("  v_add_f32_dpp v5, v5, v5 row_half_mirror row_mask:0xf bank_mask:0xf")
e("  v_cvt_pk_bf16_f32 v6, v5, v5")
e("  v_cmp_u_f32 vcc, v5, v5")
e("  v_ashrrev_i32 v7, 31, v6")
e("  v_or_b32 v7, 0x80000000, v7")
e("  v_xor_b32 v6, v6, v7")
e("  v_cndmask_b32 v6, v6, 0, vcc")
e("  v_and_b32 v6, 0xffff0000, v6")
e("  v_sub_u32 v7, 2047, v3")
e("  v_lshl_or_b32 v6, v7, 5, v6        ; key")
e("  v_lshlrev_b32 v7, 2, v3")
for b in range(9):
    e(f"  global_store_dwordx4 v4, v[{8+4*b}:{11+4*b}], s[14:15] offset:{128*b}")
e("  v_cmp_eq_u32 vcc, 0, v2")
e("  s_and_saveexec_b64 s[20:21], vcc")
e(f"  global_store_dword v7, v6, s[18:19] offset:{KEYS}")
end("k1_kernel")
e(kd("k1_kernel",80))

def transpose(src,dst):
    for p in range(4):
        for d in range(4):
            a=src+(2*p)*4+d; b=src+(2*p+1)*4+d
            e(f"  v_perm_b32 v{dst+(2*d)*4+p}, v{b}, v{a}, s40")
            e(f"  v_perm_b32 v{dst+(2*d+1)*4+p}, v{b}, v{a}, s41")
def gemm_tail():
    e("  s_mov_b32 s40, 0x05040100\n  s_mov_b32 s41, 0x07060302")
    e("  s_waitcnt vmcnt(0)")
    transpose(32,128); transpose(64,32); transpose(96,64)
    T=[128,32,64]
    e("  s_nop 1")
    for b in range(3):
        for n in range(8):
            c = "0" if b==0 else f"v[{176+4*n}:{179+4*n}]"
            e(f"  v_mfma_f32_16x16x32_bf16 v[{176+4*n}:{179+4*n}], v[{160+4*b}:{163+4*b}], v[{T[b]+4*n}:{T[b]+4*n+3}], {c}")
    e("  s_nop 7")
    for n in range(8):
        a=176+4*n
        e(f"  v_add_f32_dpp v{8+n}, v{a+1}, v{a} row_ror:8 row_mask:0xf bank_mask:0x3")
        e(f"  v_add_f32_dpp v{8+n}, v{a+2}, v{a+3} row_ror:8 row_mask:0xf bank_mask:0xc")
    e("  v_lshrrev_b32 v1, 6, v0\n  v_lshlrev_b32 v1, 11, v1")
    e("  v_and_b32 v2, 63, v0\n  v_lshl_add_u32 v1, v2, 4, v1")
    e("  ds_write_b128 v1, v[8:11] offset:64")
    e("  ds_write_b128 v1, v[12:15] offset:1088")
    e("  s_waitcnt lgkmcnt(0)\n  s_barrier")

start("k2_kernel",144)
e("  v_and_b32 v1, 63, v0               ; lane")
e("  v_lshrrev_b32 v2, 6, v0            ; wave")
e("  v_lshrrev_b32 v3, 3, v1            ; g")
e("  v_mul_u32_u24 v4, 192, v2")
e("  v_lshl_add_u32 v4, v3, 3, v4")
e("  s_mov_b32 s3, 9216")
e("  v_mul_lo_u32 v4, v4, s3")
e("  v_and_b32 v5, 3, v1")
e("  v_lshlrev_b32 v5, 4, v5")
e("  s_lshl_b32 s3, s2, 6")
e("  v_add3_u32 v4, v4, v5, s3")
e("  v_and_b32 v5, 4, v1")
e("  v_cmp_eq_u32 vcc, 0, v5")
e("  s_waitcnt lgkmcnt(0)")
e("  v_mov_b32 v6, s10\n  v_mov_b32 v7, s11\n  v_mov_b32 v8, s8\n  v_mov_b32 v9, s9")
e("  v_cndmask_b32 v6, v6, v8, vcc\n  v_cndmask_b32 v7, v7, v9, vcc")
e("  v_mov_b32 v5, 0")
e("  v_lshl_add_u64 v[6:7], v[4:5], 0, v[6:7]")
e("  s_mov_b32 s22, 9216\n  s_mov_b32 s23, 0")
e(f"  s_mov_b32 s24, {9216*57}\n  s_mov_b32 s25, 0")
for b in range(3):
    for j in range(8):
        r=32+32*b+4*j
        e(f"  global_load_dwordx4 v[{r}:{r+3}], v[6:7], off")
        if j<7: e("  v_lshl_add_u64 v[6:7], v[6:7], 0, s[22:23]")
        elif b<2: e("  v_lshl_add_u64 v[6:7], v[6:7], 0, s[24:25]")
e("  v_lshlrev_b32 v4, 4, v1")
for q in range(8):
    if q==4: e("  v_add_u32 v4, 4096, v4")
    e(f"  global_load_dwordx4 v[{208+4*q}:{211+4*q}], v4, s[18:19] offset:{(q&3)*1024}")
e("  s_waitcnt vmcnt(0)")
e("  v_mov_b32 v10, 0")
e("  s_mov_b32 s26, 0")
e("k2_sel:")
e("  v_max3_u32 v8, v208, v209, v210")
for q in range(211,239,2):
    e(f"  v_max3_u32 v8, v8, v{q}, v{q+1}")
e("  v_max_u32 v8, v8, v239")
for dpp in ["row_ror:1","row_ror:2","row_ror:4","row_ror:8"]:
    e("  s_nop 1")
    e(f"  v_max_u32_dpp v8, v8, v8 {dpp} row_mask:0xf bank_mask:0xf")
e("  s_nop 1")
e("  v_readlane_b32 s27, v8, 0\n  v_readlane_b32 s28, v8, 16\n  v_readlane_b32 s29, v8, 32\n  v_readlane_b32 s30, v8, 48")
e("  s_nop 3")
e("  s_max_u32 s27, s27, s28\n  s_max_u32 s29, s29, s30\n  s_max_u32 s27, s27, s29")
for q in range(208,240):
    e(f"  v_cmp_eq_u32 vcc, s27, v{q}\n  s_nop 1\n  v_cndmask_b32 v{q}, v{q}, 0, vcc")
e("  v_bfe_u32 v9, v1, 1, 3")
e("  v_cmp_eq_u32 vcc, s26, v9")
e("  v_mov_b32 v11, s27")
e("  s_nop 1")
e("  v_cndmask_b32 v10, v10, v11, vcc")
e("  s_add_u32 s26, s26, 1\n  s_cmp_lt_u32 s26, 8\n  s_cbranch_scc1 k2_sel")
e("  s_cmp_lg_u32 s2, 0\n  s_cbranch_scc1 k2_nosel")
e("  v_lshlrev_b32 v11, 2, v9\n  v_add_u32 v11, 8192, v11")
e("  global_store_dword v11, v10, s[18:19]")
e("k2_nosel:")
e("  v_bfe_u32 v11, v10, 5, 11\n  v_sub_u32 v11, 2047, v11   ; token")
e("  v_mul_u32_u24 v11, 1152, v11")
e("  v_lshrrev_b32 v12, 4, v1\n  v_lshlrev_b32 v12, 5, v12")
e("  v_and_b32 v13, 1, v1\n  v_lshl_add_u32 v12, v13, 4, v12")
e("  v_mul_u32_u24 v13, 384, v2")
e("  v_add3_u32 v11, v11, v12, v13")
for b in range(3):
    e(f"  global_load_dwordx4 v[{160+4*b}:{163+4*b}], v11, s[4:5] offset:{128*b}")
gemm_tail()
e("  v_cmp_gt_u32 vcc, 64, v0\n  s_and_saveexec_b64 s[20:21], vcc\n  s_cbranch_execz k2_kernel_end")
e("  v_and_b32 v1, 1, v0\n  v_lshlrev_b32 v1, 10, v1")
e("  v_bfe_u32 v2, v0, 1, 2\n  v_and_b32 v3, 0x38, v0\n  v_add_u32 v2, v2, v3\n  v_lshl_add_u32 v1, v2, 4, v1")
for w in range(3):
    e(f"  ds_read_b128 v[{8+4*w}:{11+4*w}], v1 offset:{64+2048*w}")
    e(f"  ds_read_b128 v[{20+4*w}:{23+4*w}], v1 offset:{64+2048*w+64}")
e("  s_waitcnt lgkmcnt(0)")
e("  s_mov_b32 s30, 0xbfb8aa3b")
for i in range(4):
    e(f"  v_add_f32 v{8+i}, v{8+i}, v{12+i}\n  v_add_f32 v{8+i}, v{8+i}, v{16+i}")
    e(f"  v_add_f32 v{20+i}, v{20+i}, v{24+i}\n  v_add_f32 v{20+i}, v{20+i}, v{28+i}")
for i in range(4):
    e(f"  v_cvt_pk_bf16_f32 v{8+i}, v{8+i}, v{20+i}")
for i in range(4):
    e(f"  v_lshlrev_b32 v{12+i}, 16, v{8+i}")
    e(f"  v_mul_f32 v{16+i}, s30, v{12+i}")
    e(f"  v_exp_f32 v{16+i}, v{16+i}\n  s_nop 0")
    e(f"  v_add_f32 v{16+i}, 1.0, v{16+i}")
    e(f"  v_rcp_f32 v{16+i}, v{16+i}\n  s_nop 0")
    e(f"  v_mul_f32 v{16+i}, v{12+i}, v{16+i}")
    e(f"  v_cvt_pk_bf16_f32 v{16+i}, v{16+i}, v{16+i}")
    e(f"  v_and_b32 v{16+i}, 0xffff0000, v{16+i}")
    e(f"  v_and_b32 v{8+i}, 0xffff0000, v{8+i}")
    e(f"  v_mul_f32 v{16+i}, v{16+i}, v{8+i}")
e("  v_cvt_pk_bf16_f32 v8, v16, v17\n  v_cvt_pk_bf16_f32 v9, v18, v19")
e("  v_bfe_u32 v1, v0, 2, 1\n  v_lshlrev_b32 v1, 8, v1")
e("  v_lshrrev_b32 v2, 3, v0\n  v_lshl_add_u32 v1, v2, 5, v1")
e("  v_bfe_u32 v2, v0, 1, 1\n  v_lshl_add_u32 v1, v2, 4, v1")
e("  v_and_b32 v2, 1, v0\n  v_lshl_add_u32 v1, v2, 3, v1")
e(f"  s_lshl_b32 s3, s2, 9\n  s_add_u32 s3, s3, {HOFF}\n  v_add_u32 v1, s3, v1")
e("  global_store_dwordx2 v1, v[8:9], s[18:19]")
end("k2_kernel")
e(kd("k2_kernel",240))

start("k3_kernel",72)
e("  s_mul_i32 s20, s2, 7282\n  s_lshr_b32 s20, s20, 16   ; i = wg/9")
e("  s_mul_i32 s21, s20, 9\n  s_sub_u32 s21, s2, s21     ; j")
e("  v_and_b32 v1, 63, v0\n  v_lshrrev_b32 v2, 6, v0\n  v_lshrrev_b32 v3, 3, v1")
e("  v_mul_u32_u24 v4, 192, v2\n  v_lshl_add_u32 v4, v3, 3, v4")
e("  s_mul_i32 s22, s20, 576\n  v_add_u32 v4, s22, v4")
e("  v_mul_u32_u24 v4, 1152, v4")
e("  v_and_b32 v5, 7, v1\n  v_lshlrev_b32 v5, 4, v5\n  s_lshl_b32 s22, s21, 7\n  v_add3_u32 v4, v4, v5, s22")
e("  s_waitcnt lgkmcnt(0)")
for b in range(3):
    for j in range(8):
        r=32+32*b+4*j
        e(f"  global_load_dwordx4 v[{r}:{r+3}], v4, s[12:13] offset:{1152*(j&3)}")
        if j==3: e("  v_add_u32 v4, 4608, v4")
        if j==7 and b<2: e(f"  v_add_u32 v4, {1152*60}, v4")
e("  s_mul_i32 s22, s20, 9216")
e(f"  s_add_u32 s22, s22, {HOFF}")
e("  v_mul_u32_u24 v6, 3072, v2\n  v_lshlrev_b32 v7, 4, v1\n  v_add3_u32 v6, v6, v7, s22")
for b in range(3):
    e(f"  global_load_dwordx4 v[{160+4*b}:{163+4*b}], v6, s[18:19] offset:{1024*b}")
gemm_tail()
e("  v_cmp_gt_u32 vcc, 128, v0\n  s_and_saveexec_b64 s[24:25], vcc\n  s_cbranch_execz k3_kernel_end")
e("  v_and_b32 v1, 1, v0\n  v_lshlrev_b32 v1, 10, v1\n  v_lshrrev_b32 v2, 1, v0\n  v_lshl_add_u32 v1, v2, 4, v1")
for w in range(3):
    e(f"  ds_read_b128 v[{8+4*w}:{11+4*w}], v1 offset:{64+2048*w}")
e("  s_waitcnt lgkmcnt(0)")
for i in range(4):
    e(f"  v_add_f32 v{8+i}, v{8+i}, v{12+i}\n  v_add_f32 v{8+i}, v{8+i}, v{16+i}")
e(f"  s_lshl_b32 s3, s2, 11\n  s_add_u32 s3, s3, {PART}\n  v_lshlrev_b32 v1, 4, v0\n  v_add_u32 v1, s3, v1")
e("  global_store_dwordx4 v1, v[8:11], s[18:19]")
end("k3_kernel")
e(kd("k3_kernel",240))

start("k4_kernel",72)
e("  s_mul_i32 s20, s2, 7282\n  s_lshr_b32 s20, s20, 16   ; t")
e("  s_mul_i32 s21, s20, 9\n  s_sub_u32 s21, s2, s21     ; j")
e("  s_waitcnt lgkmcnt(0)")
e(f"  s_lshl_b32 s22, s20, 2\n  s_add_u32 s22, s22, {SEL}")
e("  s_load_dword s23, s[18:19], s22")
e(f"  s_lshl_b32 s24, s21, 11\n  s_lshl_b32 s25, s20, 8\n  s_add_u32 s24, s24, s25\n  s_add_u32 s24, s24, {PART}")
e("  v_lshlrev_b32 v1, 2, v0\n  v_add_u32 v1, s24, v1")
for i in range(8):
    e(f"  global_load_dword v{8+i}, v1, s[18:19]")
    if i<7: e("  v_add_u32 v1, 18432, v1")
e("  s_waitcnt lgkmcnt(0)")
e("  s_bfe_u32 s26, s23, 0xb0005\n  s_sub_u32 s26, 2047, s26\n  s_mul_i32 s26, s26, 1152\n  s_lshl_b32 s27, s21, 7\n  s_add_u32 s26, s26, s27")
e("  v_lshlrev_b32 v2, 1, v0\n  v_add_u32 v2, s26, v2")
e("  global_load_ushort v3, v2, s[4:5]")
e("  s_ashr_i32 s27, s23, 31\n  s_not_b32 s27, s27\n  s_or_b32 s27, s27, 0x80000000\n  s_xor_b32 s27, s27, s23\n  s_and_b32 s27, s27, 0xffff0000")
e("  v_mov_b32 v4, s27\n  v_mul_f32 v4, 0xbfb8aa3b, v4\n  v_exp_f32 v4, v4\n  s_nop 0\n  v_add_f32 v4, 1.0, v4\n  v_rcp_f32 v4, v4\n  s_nop 0")
e("  v_cvt_pk_bf16_f32 v4, v4, v4\n  v_and_b32 v4, 0xffff0000, v4")
e("  s_waitcnt vmcnt(0)")
for i in range(1,8): e(f"  v_add_f32 v8, v8, v{8+i}")
e("  v_cvt_pk_bf16_f32 v8, v8, v8\n  v_and_b32 v8, 0xffff0000, v8\n  v_mul_f32 v8, v8, v4")
e("  v_cvt_pk_bf16_f32 v8, v8, v8\n  v_and_b32 v8, 0xffff0000, v8\n  v_lshlrev_b32 v3, 16, v3\n  v_add_f32 v8, v8, v3")
e("  v_cvt_pk_bf16_f32 v8, v8, v8")
e("  global_store_short v2, v8, s[14:15]")
end("k4_kernel")
e(kd("k4_kernel",16))
open(sys.argv[1],'w').write("\n".join(L)+"\n")
```
